```python
import torch

def _softmax(x, axis=-1):
    return torch.softmax(x, dim=axis)
def _gelu(x):
    return torch.nn.functional.gelu(x, approximate="tanh")
def _silu(x):
    return torch.nn.functional.silu(x)
def _sigmoid(x):
    return torch.sigmoid(x)
def _layernorm(x, axis=-1, eps=1e-5):
    m = x.mean(dim=axis, keepdim=True)
    v = x.var(dim=axis, keepdim=True, unbiased=False)
    return (x - m) / torch.sqrt(v + eps)
def _scatter_add(tgt, idx, src, axis=0):
    return tgt.clone().index_add_(axis, idx, src)
def _segment_sum(src, seg, n):
    out = torch.zeros((n,) + src.shape[1:], dtype=src.dtype)
    return out.index_add_(0, seg, src)
def _pad(x, pw):
    flat = tuple(v for pair in reversed(pw) for v in pair)
    return torch.nn.functional.pad(x, flat)

kernel_name = 'sequential_preLN__ssm_conv_s4d__moe_arch_mod__prompt'

def setup_inputs():

    _w = (lambda a: (lambda t: t.to(torch.bfloat16) if t.is_floating_point() else t)(torch.as_tensor(a)))
    def _A_setup():
        Bsz, L, D, N = 1, 2048, 512, 128
        return {
            "u": _w((lambda *s: torch.randn(*s, dtype=torch.bfloat16) * 0.1)(Bsz, L, D)),
            "log_A_real": _w((lambda *s: torch.randn(*s, dtype=torch.bfloat16) * 6.4)(D, N) * 0.5),
            "A_imag": _w((lambda *s: torch.randn(*s, dtype=torch.bfloat16) * 0.1)(D, N) * 3.14),
            "C_real": _w((lambda *s: torch.randn(*s, dtype=torch.bfloat16) * 0.1)(D, N) / N ** 0.5),
            "C_imag": _w((lambda *s: torch.randn(*s, dtype=torch.bfloat16) * 0.1)(D, N) / N ** 0.5),
            "log_dt": _w((lambda *s: torch.randn(*s, dtype=torch.bfloat16) * 0.1)(D) * 0.5 - 4.0),
            "D_skip": _w((lambda *s: torch.randn(*s, dtype=torch.bfloat16) * 0.1)(D)),
        }
    _A_in = _A_setup()

    def _B_setup():
        B, S, D, F, C = 1, 2048, 512, 1792, 8
        return {
            "x": _w((lambda *s: torch.randn(*s, dtype=torch.bfloat16) * 0.1)(B, S, D)),
            "w_r": _w((lambda *s: torch.randn(*s, dtype=torch.bfloat16) * 0.1)(D)),
            "w_gate": _w((lambda *s: torch.randn(*s, dtype=torch.bfloat16) * 0.1)(D, F)),
            "w_up": _w((lambda *s: torch.randn(*s, dtype=torch.bfloat16) * 0.1)(D, F)),
            "w_down": _w((lambda *s: torch.randn(*s, dtype=torch.bfloat16) * 0.1)(F, D)),
        }
    _B_in = _B_setup()

    return {
        "A_u": _A_in["u"],
        "A_log_A_real": _A_in["log_A_real"],
        "A_A_imag": _A_in["A_imag"],
        "A_C_real": _A_in["C_real"],
        "A_C_imag": _A_in["C_imag"],
        "A_log_dt": _A_in["log_dt"],
        "A_D_skip": _A_in["D_skip"],
        "B_x": _B_in["x"],
        "B_w_r": _B_in["w_r"],
        "B_w_gate": _B_in["w_gate"],
        "B_w_up": _B_in["w_up"],
        "B_w_down": _B_in["w_down"],
    }

def reference(A_u, A_log_A_real, A_A_imag, A_C_real, A_C_imag, A_log_dt, A_D_skip, B_x, B_w_r, B_w_gate, B_w_up, B_w_down):
    def _A_ref(u, log_A_real, A_imag, C_real, C_imag, log_dt, D_skip):
        L = u.shape[1]
        dt = torch.exp(log_dt)
        A = -torch.exp(log_A_real) + 1j * A_imag
        C = (C_real + 1j * C_imag) * dt[:, None]
        pos = (lambda x, dt: x.to(dt))(torch.arange(L), log_dt.dtype)
        P = torch.exp((A * dt[:, None])[:, :, None] * pos[None, None, :])
        K = 2.0 * torch.einsum("dn,dnl->dl", C, P).real
        L2 = 2 * L
        u_t = (lambda x, *d: x.permute(*d))(u, 0, 2, 1)
        Kf = (lambda x, *a, **k: torch.fft.rfft(x.float(), *a, **k))(K, L2)
        Uf = (lambda x, *a, **k: torch.fft.rfft(x.float(), *a, **k))(u_t, L2)
        y = (lambda x, *a, **k: torch.fft.irfft(x, *a, **k).to(torch.bfloat16))(Uf * Kf[None, :, :], L2)[:, :, :L]
        y = (lambda x, *d: x.permute(*d))(y, 0, 2, 1)
        return y + u * D_skip[None, None, :]

    def _B_ref(x, w_r, w_gate, w_up, w_down):
        B, S, D = x.shape
        C = 8
        r = x @ w_r
        idx = torch.argsort(-r, axis=-1)[:, :C]
        idx_e = (lambda x, n, axis: torch.repeat_interleave(x, n, dim=axis))(idx.reshape(B, C, 1), D, axis=2)
        x_sel = (lambda x, i, axis: torch.take_along_dim(x, i, dim=axis))(x, idx_e, axis=1)
        g = _silu(x_sel @ w_gate)
        u = x_sel @ w_up
        y = (g * u) @ w_down
        r_sel = _sigmoid((lambda x, i, axis: torch.take_along_dim(x, i, dim=axis))(r, idx, axis=1))
        y = y * r_sel.reshape(B, C, 1)
        b_off = (torch.arange(B) * S).reshape(B, 1)
        flat_idx = (idx + b_off).reshape(B * C)
        zero = (x * 0.0).reshape(B * S, D)
        upd = _scatter_add(zero, flat_idx, y.reshape(B * C, D), axis=0)
        return x + upd.reshape(B, S, D)

    x = A_u
    h = x + _A_ref(_layernorm(x, axis=-1), A_log_A_real, A_A_imag, A_C_real, A_C_imag, A_log_dt, A_D_skip)
    h2 = h + _B_ref(_layernorm(h, axis=-1), B_w_r, B_w_gate, B_w_up, B_w_down)
    return h2
```

```python
import re

TRANS = {"v_exp_f32","v_log_f32","v_rcp_f32","v_rsq_f32","v_sqrt_f32","v_sin_f32","v_cos_f32"}

def split_ops(s):
    ops, depth, cur = [], 0, ""
    for ch in s:
        if ch == "[": depth += 1
        if ch == "]": depth -= 1
        if ch == "," and depth == 0:
            ops.append(cur.strip()); cur = ""
        else:
            cur += ch
    if cur.strip(): ops.append(cur.strip())
    return ops

REG_RE = re.compile(r"^-?\|?([vsa])(\d+)\|?$")
RNG_RE = re.compile(r"^-?\|?([vsa])\[(\d+):(\d+)\]\|?$")
def regs(op):
    op = op.strip()
    tok = op.split()[0] if op else ""
    m = REG_RE.match(tok)
    if m: return {(m.group(1), int(m.group(2)))}
    m = RNG_RE.match(tok)
    if m: return {(m.group(1), i) for i in range(int(m.group(2)), int(m.group(3)) + 1)}
    if tok in ("vcc",): return {("s", "vcc_lo"), ("s", "vcc_hi")}
    if tok in ("vcc_lo", "vcc_hi"): return {("s", tok)}
    if tok == "exec": return {("s", "exec")}
    if tok == "m0": return {("s", "m0")}
    return set()

class Ins:
    pass

def parse(text):
    t = text.strip()
    parts = t.split(None, 1)
    mn = parts[0]
    rest = parts[1] if len(parts) > 1 else ""
    ops = split_ops(rest)
    I = Ins(); I.text = t; I.mn = mn; I.ops = ops
    I.dst = set(); I.src = set(); I.cls = "other"
    I.dpp = ("row_" in rest) or ("quad_perm" in rest) or ("wave_" in rest)
    R = [regs(o) for o in ops]
    I.R = R
    base = mn.replace("_e32", "").replace("_e64", "").replace("_dpp", "").replace("_sdwa", "")
    I.base = base
    if mn.startswith("v_mfma"):
        I.cls = "mfma"; I.dst = R[0]; I.A = R[1]; I.B = R[2]; I.C = R[3]; I.src = R[1] | R[2] | R[3]
        I.passes = 8 if "32x32" in mn else 4
    elif mn.startswith("v_"):
        I.cls = "valu"; I.trans = base in TRANS
        if base.startswith("v_cmp"):
            I.dst = R[0]; I.src = set().union(*R[1:])
        elif base in ("v_readlane_b32", "v_readfirstlane_b32"):
            I.dst = R[0]; I.src = set().union(*R[1:]); I.rl = True
        elif base.startswith("v_permlane"):
            I.dst = R[0] | R[1]; I.src = R[0] | R[1]; I.perm = True
        elif base in ("v_add_co_u32", "v_sub_co_u32", "v_addc_co_u32", "v_subb_co_u32", "v_subrev_co_u32"):
            I.dst = R[0] | R[1]; I.src = set().union(*R[2:])
        else:
            I.dst = R[0]; I.src = set().union(*R[1:]) if len(R) > 1 else set()
            if base in ("v_fmac_f32", "v_dot2c_f32_bf16", "v_writelane_b32", "v_mac_f32") or I.dpp or "UNUSED_PRESERVE" in rest:
                I.src |= R[0]
    elif mn.startswith("ds_"):
        I.cls = "ds"
        if mn.startswith("ds_read") or "_rtn" in mn or mn.startswith("ds_bpermute") or mn.startswith("ds_permute") or mn.startswith("ds_swizzle"):
            I.dst = R[0]; I.src = set().union(*R[1:])
            if "d16" in mn: I.src |= R[0]
        else:
            I.src = set().union(*R)
    elif mn.startswith("global_") or mn.startswith("buffer_") or mn.startswith("flat_"):
        I.cls = "vmem"
        if "load_lds" in mn:
            I.src = set().union(*R) | {("s", "m0")}; I.ldsdma = True
        elif "_load" in mn:
            I.dst = R[0]; I.src = set().union(*R[1:])
            if "d16" in mn: I.src |= R[0]
        elif "atomic" in mn and "sc0" in rest:
            I.dst = R[0]; I.src = set().union(*R[1:])
        else:
            I.src = set().union(*R)
            if mn.endswith("x4") or mn.endswith("x3"): I.wide = R[1]
    elif mn.startswith("s_"):
        I.cls = "salu"
        if mn in ("s_nop",):
            I.cls = "nop"
        elif mn.startswith("s_cmp") or mn.startswith("s_cbranch") or mn in ("s_branch", "s_barrier", "s_waitcnt", "s_endpgm", "s_sleep", "s_setprio", "s_bitcmp1_b32", "s_bitcmp0_b32"):
            I.src = set().union(*R) if R else set()
        else:
            I.dst = R[0] if R else set(); I.src = set().union(*R[1:]) if len(R) > 1 else set()
            if "saveexec" in mn: I.dst |= {("s", "exec")}
    return I

def isv(r): return r[0] in ("v", "a")
def iss(r): return r[0] == "s"

def need(p, c):
    n = 0
    if p.cls == "valu":
        wv = {r for r in p.dst if isv(r)}
        ws = {r for r in p.dst if iss(r)}
        if wv:
            if c.cls == "valu":
                if c.dpp and (wv & c.src): n = max(n, 2)
                if getattr(c, "rl", False) and (wv & c.src): n = max(n, 1)
                if getattr(c, "perm", False) and (wv & c.src): n = max(n, 2)
                if p.trans and not c.trans and (wv & c.src): n = max(n, 1)
            if c.cls == "mfma" and (wv & c.src): n = max(n, 2)
            if p.trans and c.cls in ("ds", "vmem") and (wv & c.src): n = max(n, 1)
        if ws:
            if c.cls == "valu" and (ws & c.src):
                n = max(n, 2)
                if c.base in ("v_readlane_b32", "v_writelane_b32") and len(c.R) > 2 and (ws & c.R[2]): n = max(n, 4)
            if c.cls == "vmem" and (ws & c.src): n = max(n, 5)
            if c.cls == "salu" and (ws & c.src) and not c.mn.startswith("s_cbranch"): n = max(n, 1)
    if p.cls == "valu" and p.base.startswith("v_dot"):
        if (c.src | c.dst) & p.dst:
            same_c = (c.cls == "valu" and c.base == p.base and len(c.R) > 3 and (c.R[3] & p.dst) and not ((c.R[1] | c.R[2]) & p.dst))
            if not same_c: n = max(n, 3)
    if p.cls == "mfma":
        big = 12 if p.passes == 8 else 8
        mid = 10 if p.passes == 8 else 6
        war = 7 if p.passes == 8 else 3
        if c.cls == "mfma":
            if c.C & p.dst:
                if c.C == p.dst and c.mn == p.mn: pass
                else: n = max(n, mid)
            if (c.A | c.B) & p.dst: n = max(n, big)
            if (c.dst & p.dst) and not (c.C == p.dst and c.mn == p.mn and c.dst == p.dst): n = max(n, mid)
        elif c.cls == "valu":
            if (c.src | c.dst) & p.dst: n = max(n, big)
            if c.dst & p.C: n = max(n, war)
        elif c.cls in ("ds", "vmem"):
            if (c.src | c.dst) & p.dst: n = max(n, big)
    if p.cls == "vmem" and getattr(p, "wide", None):
        if c.cls == "valu" and (c.dst & p.wide): n = max(n, 2)
        elif c.dst & p.wide: n = max(n, 1)
    if p.cls == "salu" and (("s", "m0") in p.dst):
        if getattr(c, "ldsdma", False): n = max(n, 1)
    return n

def maxneed(p):
    if p.cls == "valu":
        if any(iss(r) for r in p.dst): return 5
        if p.base.startswith("v_dot"): return 3
        return 2
    if p.cls == "mfma": return 12 if p.passes == 8 else 8
    if p.cls == "vmem" and getattr(p, "wide", None): return 2
    if p.cls == "salu" and (("s", "m0") in p.dst): return 1
    return 0

class Em:
    def __init__(self):
        self.out = []; self.hist = []; self.pos = 0; self.nnops = 0; self.ninstr = 0
    def raw(self, s):
        self.out.append(s)
    def comment(self, s):
        self.out.append("    ; " + s)
    def _nop(self, k):
        while k > 0:
            m = min(k, 16)
            self.out.append(f"    s_nop {m-1}")
            self.pos += m; k -= m; self.nnops += 1
    def ins(self, text):
        I = parse(text)
        if I.cls == "nop":
            k = int(I.ops[0]) + 1
            self.out.append("    " + I.text); self.pos += k
            return
        req = 0
        for (p, ppos) in self.hist:
            d = self.pos - ppos - 1
            n = need(p, I)
            if n > d: req = max(req, n - d)
        if req: self._nop(req)
        self.out.append("    " + I.text)
        self.hist.append((I, self.pos))
        self.pos += 1; self.ninstr += 1
        self.hist = [(p, q) for (p, q) in self.hist if self.pos - q <= 14]
    def __call__(self, text):
        for line in text.split("\n"):
            line = line.split(";")[0].strip() if not line.strip().startswith(";") else ""
            if not line: continue
            if line.endswith(":"):
                self.label(line[:-1])
            else:
                self.ins(line)
    def label(self, name, reset=True):
        self.out.append(name + ":")
        if reset:
            self.hist = [(p, self.pos - 1) for (p, q) in self.hist]
    def flush(self):
        req = 0
        for (p, ppos) in self.hist:
            d = self.pos - ppos - 1
            req = max(req, maxneed(p) - d)
        if req > 0: self._nop(req)
    def text(self):
        return "\n".join(self.out) + "\n"
```

```python
import sys
sys.path.insert(0, "gen")
from emit import Em

KNAME = "sequential_preLN__ssm_conv_s4d__moe_arch_mod__prompt_kernel"

BLK    = 8320
H1OFF  = 0x10000
H2OFF  = 0x218000
KEYOFF = 0x420000
ACTOFF = 0x422000
X2OFF  = 0x430000
HHOFF  = 0x630000
PROFOFF= 0x830000
DUMPOFF= 0x900000
TAB  = 0;      TABC = 29568; GSZ = 12672; TROW = 528
KT   = 59136;  KTC = 12544;  KTS = 3136
UI   = 84224;  UIC = 7680
XA   = 99584;  XAS = 2112
EX   = 108032; EXS = 9216*2
R3P  = EX + 36864
MISC = 163328
LDS_BYTES = 163840
UR = EX
YR = UI
T0 = 1092; T1 = 32
LIST = EX; PART = EX + 8192
TK = MISC + 128; CNT = MISC + 192; SEL = MISC + 224; AL = MISC + 256; KST = MISC + 64
WB = 140

LOG2E = 0x3fb8aa3b
INV2PI = 0x3e22f983

def nib(vals):
    x = 0
    for i, v in enumerate(vals): x |= (v & 15) << (4*i)
    return x
RM0 = nib([7,6,5,4,3,2,1,0, 12,11,10,10,10,9,8,8])
RM1 = nib([2,2,1,1,1,0,0,0, 5,5,4,4,4,3,3,3])
RMX = nib([0,1,2,3,4,0,0,0, 0,0,0,0,0,0,0,0])

S_X, S_LAR, S_AI, S_CR, S_CI, S_LDT, S_DSK = "s[8:9]", "s[10:11]", "s[12:13]", "s[14:15]", "s[16:17]", "s[18:19]", "s[20:21]"
S_WR, S_WG, S_WU, S_WD, S_OUT, S_DBG, S_WS = "s[24:25]", "s[26:27]", "s[28:29]", "s[30:31]", "s[32:33]", "s[34:35]", "s[36:37]"
sA, sW = "s38", "s39"
sT = ["s40", "s41", "s42", "s43"]
sE, sLDT = "s44", "s45"
S_H1, S_H2, S_KEY, S_ACT, S_X2, S_HH = "s[56:57]", "s[58:59]", "s[60:61]", "s[62:63]", "s[64:65]", "s[66:67]"

class G:
    def __init__(self, prof=False, stop=None, dump=None, cyc=False, pw=0):
        self.cyc = cyc; self.pw = pw
        self.e = Em(); self.prof = prof; self.stop = stop; self.dump = dump; self.nstamp = 0; self.uid = 0
    def L(self, p):
        self.uid += 1; return f"L_{p}{self.uid}"
    def stamp(self, k=None):
        if self.prof:
            if k is None:
                k = self.nstamp
            self.nstamp = max(self.nstamp, k + 1)
            assert k < 16
            self.e(f"{'s_memtime' if self.cyc else 's_memrealtime'} s[{70+2*k}:{71+2*k}]")
    def maybe_stop(self, name):
        e = self.e
        if self.stop != name: return
        e("s_waitcnt vmcnt(0) lgkmcnt(0)\ns_barrier")
        if self.dump:
            addr, nbytes = self.dump
            lp = self.L("dump")
            e(f"s_mul_i32 s48, s2, {nbytes}")
            e(f"s_add_u32 s48, s48, {DUMPOFF}")
            e(f"v_lshlrev_b32 v200, 4, v0")
            e(f"s_mov_b32 s49, 0")
            e.label(lp)
            e(f"v_add_u32 v201, s49, v200")
            e(f"v_cmp_gt_u32 vcc, {nbytes}, v201")
            e(f"s_and_saveexec_b64 s[50:51], vcc")
            e(f"v_add_u32 v202, {addr}, v201")
            e(f"ds_read_b128 v[204:207], v202")
            e(f"v_add_u32 v203, s48, v201")
            e(f"s_waitcnt lgkmcnt(0)")
            e(f"global_store_dwordx4 v203, v[204:207], {S_WS}")
            e(f"s_waitcnt vmcnt(0)")
            e(f"s_mov_b64 exec, s[50:51]")
            e(f"s_add_u32 s49, s49, 8192")
            e(f"s_cmp_lt_u32 s49, {nbytes}")
            e.flush()
            e(f"s_cbranch_scc1 {lp}")
        e("s_branch L_FIN")

    def wsum2(self, a, b, t1, t2):
        e = self.e
        for r in (8, 4, 2, 1):
            e(f"v_add_f32_dpp {a}, {a}, {a} row_ror:{r} row_mask:0xf bank_mask:0xf")
            e(f"v_add_f32_dpp {b}, {b}, {b} row_ror:{r} row_mask:0xf bank_mask:0xf")
        for p in ("16", "32"):
            e(f"v_mov_b32 {t1}, {a}\nv_mov_b32 {t2}, {b}")
            e(f"v_permlane{p}_swap_b32 {a}, {t1}\nv_permlane{p}_swap_b32 {b}, {t2}")
            e(f"v_add_f32 {a}, {a}, {t1}\nv_add_f32 {b}, {b}, {t2}")
    def wred1(self, op, a, t1):
        e = self.e
        for r in (8, 4, 2, 1):
            e(f"{op}_dpp {a}, {a}, {a} row_ror:{r} row_mask:0xf bank_mask:0xf")
        for p in ("16", "32"):
            e(f"v_mov_b32 {t1}, {a}")
            e(f"v_permlane{p}_swap_b32 {a}, {t1}")
            e(f"{op} {a}, {a}, {t1}")

    def ln_stats(self, x, m, rs, t):
        e = self.e
        d = t
        s1, s2, t1, t2 = f"v{t+8}", f"v{t+9}", f"v{t+10}", f"v{t+11}"
        e(f"v_readfirstlane_b32 s48, v{x}")
        for i in range(8):
            e(f"v_subrev_f32 v{d+i}, s48, v{x+i}")
        e(f"v_add_f32 {s1}, v{d}, v{d+1}\nv_mul_f32 {s2}, v{d}, v{d}")
        e(f"v_fmac_f32 {s2}, v{d+1}, v{d+1}")
        for i in range(2, 8):
            e(f"v_add_f32 {s1}, {s1}, v{d+i}\nv_fmac_f32 {s2}, v{d+i}, v{d+i}")
        self.wsum2(s1, s2, t1, t2)
        R = 0x3b000000
        e(f"v_mul_f32 {s1}, {R:#x}, {s1}")
        e(f"v_mul_f32 {s2}, {R:#x}, {s2}")
        e(f"v_add_f32 {t1}, s48, {s1}")
        e(f"v_fma_f32 {s2}, -{s1}, {s1}, {s2}")
        e(f"v_max_f32 {s2}, 0, {s2}")
        e(f"v_cvt_pk_bf16_f32 {t1}, {t1}, {s2}")
        e(f"v_lshlrev_b32 v{m}, 16, {t1}")
        e(f"v_and_b32 {s2}, 0xffff0000, {t1}")
        e(f"v_add_f32 {s2}, 0x3727c5ac, {s2}")
        e(f"v_cvt_pk_bf16_f32 {s2}, {s2}, {s2}")
        e(f"v_lshlrev_b32 {s2}, 16, {s2}")
        e(f"v_sqrt_f32 {s2}, {s2}")
        e(f"v_cvt_pk_bf16_f32 {s2}, {s2}, {s2}")
        e(f"v_lshlrev_b32 {s2}, 16, {s2}")
        e(f"v_rcp_f32 v{rs}, {s2}")

    def unpack8(self, p, x):
        e = self.e
        for q in range(4):
            e(f"v_lshlrev_b32 v{x+2*q}, 16, v{p+q}\nv_and_b32 v{x+2*q+1}, 0xffff0000, v{p+q}")

    def ln_apply(self, x, m, rs, o, t):
        e = self.e
        for q in range(4):
            e(f"v_pk_add_f32 v[{t}:{t+1}], v[{x+2*q}:{x+2*q+1}], v[{m}:{m+1}] op_sel_hi:[1,0] neg_lo:[0,1] neg_hi:[0,1]")
            e(f"v_cvt_pk_bf16_f32 v{t+2}, v{t}, v{t+1}")
            e(f"v_lshlrev_b32 v{t}, 16, v{t+2}\nv_and_b32 v{t+1}, 0xffff0000, v{t+2}")
            e(f"v_pk_mul_f32 v[{t}:{t+1}], v[{t}:{t+1}], v[{rs}:{rs+1}] op_sel_hi:[1,0]")
            e(f"v_cvt_pk_bf16_f32 v{o+q}, v{t}, v{t+1}")

    def cmul(self, d, a, b, t):
        e = self.e
        e(f"v_pk_mul_f32 v[{t}:{t+1}], v[{a}:{a+1}], v[{b}:{b+1}] op_sel:[0,0] op_sel_hi:[1,0]")
        e(f"v_pk_fma_f32 v[{d}:{d+1}], v[{a}:{a+1}], v[{b}:{b+1}], v[{t}:{t+1}] op_sel:[1,1,0] op_sel_hi:[0,1,1] neg_lo:[1,0,0]")

    def wpow(self, d, zr2, zv, p, t):
        import struct
        e = self.e
        lit = struct.unpack("<I", struct.pack("<f", float(p)))[0]
        if p == 1:
            e(f"v_exp_f32 v{t}, v{zr2}\nv_fract_f32 v{t+1}, v{zv}")
        else:
            e(f"v_mul_f32 v{t}, {lit:#x}, v{zr2}\nv_mul_f32 v{t+1}, {lit:#x}, v{zv}")
            e(f"v_exp_f32 v{t}, v{t}\nv_fract_f32 v{t+1}, v{t+1}")
        e(f"v_cos_f32 v{t+2}, v{t+1}\nv_sin_f32 v{t+1}, v{t+1}")
        e(f"v_mul_f32 v{d}, v{t}, v{t+2}\nv_mul_f32 v{d+1}, v{t}, v{t+1}")

    def build(self):
        e = self.e
        e.raw(HEADER)
        e.raw(f""".amdgcn_target "amdgcn-amd-amdhsa--gfx950"
.text
.globl {KNAME}
.p2align 8
.type {KNAME},@function
{KNAME}:""")
        self.p0()
        self.phaseA()
        self.tables()
        self.kgen()
        self.h1_consume()
        self.conv()
        self.ln2()
        self.ffn()
        e.label("L_FIN")
        if self.prof: self.prof_out()
        e.label("L_END")
        e("s_endpgm")
        e.raw("L_CODE_END:")
        e.raw(FOOTER)
        return e.text()

    def p0(self):
        e = self.e
        e("s_cmp_ge_u32 s2, 256\ns_cbranch_scc1 L_END")
        if self.prof:
            for k in range(70, 102): e(f"s_mov_b32 s{k}, 0")
        e("s_getpc_b64 s[46:47]")
        e.label("L_PC", reset=False)
        e("s_load_dwordx16 s[8:23], s[0:1], 0\ns_load_dwordx8 s[24:31], s[0:1], 64\ns_load_dwordx4 s[32:35], s[0:1], 96\ns_load_dwordx2 s[36:37], s[0:1], 112")
        self.stamp()
        e("v_lshlrev_b32 v16, 6, v0")
        e("v_min_u32 v16, L_CODE_END-L_PC-4, v16")
        e("global_load_dword v255, v16, s[46:47]")
        e("v_and_b32 v1, 63, v0\nv_lshrrev_b32 v16, 6, v0\nv_lshlrev_b32 v3, 4, v0")
        e(f"v_readfirstlane_b32 {sW}, v16")
        e(f"s_and_b32 s48, s2, 7\ns_lshl_b32 s48, s48, 5\ns_lshr_b32 s49, s2, 3\ns_add_u32 {sA}, s48, s49")
        e(f"v_lshrrev_b32 v16, 1, v0\ns_movk_i32 s48, {BLK}\nv_mul_lo_u32 v2, v16, s48")
        e(f"v_and_b32 v16, 1, v0\nv_lshlrev_b32 v16, 4, v16\ns_lshl_b32 s48, {sA}, 5\nv_add3_u32 v2, v2, v16, s48")
        e(f"s_lshl_b32 s48, {sA}, 3\ns_add_u32 s48, s48, {sW}\ns_lshl_b32 s48, s48, 10")
        e(f"v_lshlrev_b32 v18, 4, v1\nv_add_u32 v16, s48, v18")
        e(f"s_bfe_u32 s52, {sW}, 0x10001")
        e(f"s_lshl_b32 s48, {sA}, 1\ns_add_u32 s48, s48, s52\ns_lshl_b32 s48, s48, 8")
        e(f"s_and_b32 s49, {sW}, 1\ns_lshl_b32 s49, s49, 7\ns_add_u32 s48, s48, s49")
        e(f"v_lshlrev_b32 v17, 1, v1\nv_add_u32 v17, s48, v17\nv_xor_b32 v19, 0x80, v17")
        for r in range(24, 30): e(f"v_mov_b32 v{r}, 0")
        e("v_mov_b32 v20, -1\nv_mov_b32 v21, -1\nv_mov_b32 v22, -1\nv_mov_b32 v23, -1")
        e("v_mov_b32 v32, 0\nv_mov_b32 v33, 0\nv_mov_b32 v34, 0\nv_mov_b32 v35, 0")
        e(f"s_lshl_b32 s53, {sA}, 2")
        e("s_waitcnt lgkmcnt(0)")
        self.stamp()
        e(f"global_load_dwordx4 v[4:7], v16, {S_X}")
        e(f"global_load_short_d16_hi v24, v17, {S_LAR}")
        e(f"global_load_short_d16_hi v25, v17, {S_AI}")
        e(f"global_load_short_d16_hi v26, v17, {S_CR}")
        e(f"global_load_short_d16_hi v27, v17, {S_CI}")
        e(f"global_load_short_d16_hi v28, v19, {S_CR}")
        e(f"global_load_short_d16_hi v29, v19, {S_CI}")
        e(f"s_load_dword {sLDT}, {S_LDT}, s53")
        e(f"s_load_dword {sE}, {S_WS}, 0")
        e(f"global_load_dwordx4 v[8:11], v18, {S_DSK}")
        e(f"global_load_dwordx4 v[12:15], v18, {S_WR}")
        for (pair, off) in ((56, H1OFF), (58, H2OFF), (60, KEYOFF), (62, ACTOFF), (64, X2OFF), (66, HHOFF)):
            e(f"s_add_u32 s{pair}, s36, {off:#x}\ns_addc_u32 s{pair+1}, s37, 0")
        e(f"s_mul_i32 s48, {sA}, {BLK}\nv_add_u32 v30, s48, v3")
        e(f"global_store_dwordx4 v30, v[20:23], {S_H2} sc1")
        e(f"global_store_dwordx4 v30, v[20:23], {S_H1} sc1")
        l1, l2 = self.L("nk"), self.L("na")
        e(f"s_cmp_eq_u32 {sW}, 0\ns_cbranch_scc0 {l1}")
        e(f"s_lshl_b32 s48, {sA}, 5\nv_add_u32 v31, s48, v18")
        e(f"s_mov_b64 exec, 3\nglobal_store_dwordx4 v31, v[32:35], {S_KEY} sc1\ns_mov_b64 exec, -1")
        e.label(l1)
        e(f"s_cmp_eq_u32 {sW}, 1\ns_cbranch_scc0 {l2}\ns_cmp_lt_u32 s2, 112\ns_cbranch_scc0 {l2}")
        e(f"s_lshl_b32 s48, s2, 8\nv_add_u32 v31, s48, v18")
        e(f"s_mov_b64 exec, 0xffff\nglobal_store_dwordx4 v31, v[20:23], {S_ACT} sc1\ns_mov_b64 exec, -1")
        e.label(l2)
        e(f"v_cmp_le_u32 vcc, 196, v0\nv_cndmask_b32 v31, 0, 1, vcc")
        e(f"v_mul_u32_u24 v36, {KTC - 196*16}, v31\nv_add_u32 v36, v36, v3\nv_add_u32 v36, {KT + 3*KTS}, v36")
        e(f"v_cmp_gt_u32 vcc, 392, v0\ns_and_saveexec_b64 s[50:51], vcc\nds_write_b128 v36, v[32:35]\ns_mov_b64 exec, s[50:51]")
        e(f"v_cmp_le_u32 vcc, 160, v0\nv_cndmask_b32 v31, 0, 1, vcc")
        e(f"v_mul_u32_u24 v36, {UIC - 160*16}, v31\nv_add_u32 v36, v36, v3\nv_add_u32 v36, {UI}, v36")
        e(f"v_cmp_gt_u32 vcc, 320, v0\ns_and_saveexec_b64 s[50:51], vcc\nds_write_b128 v36, v[32:35]\ns_mov_b64 exec, s[50:51]")
        e(f"v_lshrrev_b32 v31, 2, v0\nv_mul_u32_u24 v36, {XAS}, v31\nv_and_b32 v31, 3, v0\nv_lshlrev_b32 v31, 4, v31\nv_add_u32 v36, v36, v31\nv_add_u32 v36, {XA}, v36")
        e(f"v_cmp_gt_u32 vcc, 16, v0\ns_and_saveexec_b64 s[50:51], vcc\nds_write_b128 v36, v[32:35]\ns_mov_b64 exec, s[50:51]")
        self.maybe_stop("p0")

    def phaseA(self):
        e = self.e
        e("s_waitcnt vmcnt(10)")
        self.stamp()
        self.unpack8(4, 40)
        self.ln_stats(40, 48, 50, 52)
        self.ln_apply(40, 48, 50, 64, 52)
        self.unpack8(64, 40)
        for q in range(4):
            e(f"v_cvt_pk_f16_f32 v{68+q}, v{40+2*q}, v{41+2*q}")
        e(f"s_mul_i32 s48, {sW}, 1088\ns_add_u32 s48, s48, {UR}\nv_add_u32 v36, s48, v18")
        e("ds_write_b128 v36, v[68:71]")
        e("s_waitcnt lgkmcnt(0)")
        e(f"s_add_u32 {sE}, {sE}, 1")
        for q in range(4):
            e(f"s_bfe_u32 s48, {sE}, {(3 << 16) | (6*q):#x}\ns_bfe_u32 s49, {sE}, {(3 << 16) | (6*q+3):#x}\ns_lshl_b32 s49, s49, 16\ns_or_b32 {sT[q]}, s48, s49")
        e("s_waitcnt vmcnt(0)")
        e("s_barrier")
        e(f"v_bfe_u32 v36, v0, 2, 2\nv_mul_u32_u24 v36, 1088, v36")
        e(f"v_lshrrev_b32 v37, 4, v0\nv_lshlrev_b32 v37, 5, v37")
        e(f"v_and_b32 v38, 3, v0\nv_lshlrev_b32 v38, 3, v38\nv_add3_u32 v36, v36, v37, v38\nv_add_u32 v36, {UR}, v36")
        e(f"ds_read_b64_tr_b16 v[68:69], v36\nds_read_b64_tr_b16 v[70:71], v36 offset:{4*1088}")
        e("v_mov_b32 v39, 0xfff8fff8")
        e("s_waitcnt lgkmcnt(0)")
        for q in range(4):
            e(f"v_and_or_b32 v{68+q}, v{68+q}, v39, {sT[q]}")
        e(f"global_store_dwordx4 v30, v[68:71], {S_H1} sc1")
        self.stamp()
        self.unpack8(8, 52)
        for q in range(4):
            e(f"v_pk_mul_f32 v[{52+2*q}:{53+2*q}], v[{52+2*q}:{53+2*q}], v[{40+2*q}:{41+2*q}]")
            e(f"v_cvt_pk_bf16_f32 v{8+q}, v{52+2*q}, v{53+2*q}")
        self.maybe_stop("A")

    def tables(self):
        e = self.e
        lo, j = self.L("lo"), self.L("j")
        e(f"s_cmp_eq_u32 s52, 0\ns_cbranch_scc1 {lo}\ns_and_b32 s48, {sLDT}, 0xffff0000\ns_branch {j}")
        e.label(lo); e(f"s_lshl_b32 s48, {sLDT}, 16")
        e.label(j)
        e(f"v_mov_b32 v40, {LOG2E:#x}")
        e(f"v_mul_f32 v41, s48, v40\nv_mul_f32 v42, v24, v40")
        e("v_exp_f32 v41, v41\nv_exp_f32 v42, v42")
        e("v_cvt_pk_bf16_f32 v41, v41, v42")
        e("v_and_b32 v42, 0xffff0000, v41\nv_lshlrev_b32 v41, 16, v41")
        e("v_mul_f32 v43, v42, v41\nv_mul_f32 v44, v25, v41")
        e(f"v_mul_f32 v43, {0xbfb8aa3b:#x}, v43")
        e(f"v_mul_f32 v44, {INV2PI:#x}, v44")
        e(f"s_mul_i32 s48, s52, {TABC}\ns_and_b32 s49, {sW}, 1\ns_lshl_b32 s49, s49, 8\ns_add_u32 s48, s48, s49")
        e(f"v_lshlrev_b32 v45, 2, v1\nv_add_u32 v45, s48, v45")
        lg, done = self.L("grole"), self.L("tabdone")
        e(f"s_cmp_ge_u32 {sW}, 4\ns_cbranch_scc1 {lg}")
        self.wpow(46, 43, 44, 8, 56)
        self.wpow(50, 43, 44, 128, 56)
        e("v_mov_b32 v48, 1.0\nv_mov_b32 v49, 0")
        for k in range(16):
            e(f"v_cvt_pk_f16_f32 v52, v48, v49\nv_cvt_pk_f16_f32 v53, v50, v51")
            e(f"ds_write_b32 v45, v52 offset:{GSZ + k*TROW}\nds_write_b32 v45, v53 offset:{GSZ + (16+k)*TROW}")
            if k < 15:
                e(f"v_pk_mul_f32 v[54:55], v[48:49], v[46:47] op_sel:[0,0] op_sel_hi:[1,0]")
                e(f"v_pk_mul_f32 v[56:57], v[50:51], v[46:47] op_sel:[0,0] op_sel_hi:[1,0]")
                e(f"v_pk_fma_f32 v[48:49], v[48:49], v[46:47], v[54:55] op_sel:[1,1,0] op_sel_hi:[0,1,1] neg_lo:[1,0,0]")
                e(f"v_pk_fma_f32 v[50:51], v[50:51], v[46:47], v[56:57] op_sel:[1,1,0] op_sel_hi:[0,1,1] neg_lo:[1,0,0]")
        e(f"s_branch {done}")
        e.label(lg)
        for r in (26, 27, 28, 29): e(f"v_mul_f32 v{r}, v{r}, v41")
        e("v_max3_f32 v46, |v26|, |v27|, |v28|\nv_max_f32 v46, v46, |v29|")
        self.wred1("v_max_f32", "v46", "v47")
        e("v_frexp_exp_i32_f32 v46, v46")
        e("v_sub_u32 v47, 0, v46")
        e("v_ldexp_f32 v48, v26, v47\nv_ldexp_f32 v49, v27, v47")
        e("v_add_u32 v46, 1, v46\nv_ldexp_f32 v46, 1.0, v46")
        e(f"s_lshl_b32 s48, s52, 2\ns_add_u32 s48, s48, {MISC}\nv_mov_b32 v47, s48")
        e("ds_write_b32 v47, v46")
        self.wpow(50, 43, 44, 1, 60)
        self.wpow(52, 43, 44, 256, 60)
        self.cmul(54, 50, 50, 60)
        self.cmul(56, 54, 54, 60)
        self.cmul(58, 56, 56, 60)
        def wr(reg, idx):
            e(f"v_cvt_pk_f16_f32 v62, v{reg}, -v{reg+1}\nds_write_b32 v45, v62 offset:{idx*TROW}")
        e("v_mov_b32 v64, v48\nv_mov_b32 v65, v49")
        wr(64, 0)
        self.cmul(66, 48, 52, 60)
        for k in range(1, 8):
            self.cmul(64, 64, 50, 60); wr(64, k)
        wr(66, 8)
        e("v_mov_b32 v68, v66\nv_mov_b32 v69, v67")
        for k in range(9, 13):
            self.cmul(68, 68, 54, 60); wr(68, k)
        self.cmul(66, 66, 52, 60); wr(66, 13)
        self.cmul(68, 66, 56, 60); wr(68, 14)
        self.cmul(68, 68, 56, 60); wr(68, 15)
        self.cmul(66, 66, 52, 60); wr(66, 16)
        self.cmul(68, 66, 56, 60); wr(68, 17)
        self.cmul(68, 68, 56, 60); wr(68, 18)
        self.cmul(66, 66, 52, 60); wr(66, 23)
        self.cmul(66, 66, 58, 60); wr(66, 19)
        for k in (20, 21, 22):
            self.cmul(66, 66, 52, 60); wr(66, k)
        e.label(done)
        e("s_waitcnt lgkmcnt(0)\ns_barrier")
        self.stamp()
        self.maybe_stop("tab")

    def kgen(self):
        e = self.e
        e(f"global_load_dwordx4 v[72:75], v2, {S_H1} sc1")
        e(f"s_lshr_b32 s48, {sW}, 2\ns_mul_i32 s48, s48, {TABC}")
        e(f"s_bfe_u32 s53, {sW}, 0x10001")
        e(f"s_and_b32 s54, {sW}, 1")
        e("v_and_b32 v40, 15, v1\nv_lshrrev_b32 v41, 4, v1")
        e("v_lshlrev_b32 v42, 4, v41")
        e(f"s_mul_i32 s49, s54, {16*TROW}\ns_add_u32 s49, s49, s48\ns_add_u32 s49, s49, {GSZ}")
        e(f"v_mul_u32_u24 v43, {TROW}, v40\nv_add3_u32 v43, v43, v42, s49")
        e(f"s_mov_b32 s50, {RM0 & 0xffffffff:#x}\ns_mov_b32 s51, {RM0 >> 32:#x}\ns_mov_b32 s55, 0")
        l1 = self.L("rm")
        e(f"s_cmp_eq_u32 s53, 0\ns_cbranch_scc1 {l1}")
        e(f"s_mov_b32 s50, {RM1 & 0xffffffff:#x}\ns_mov_b32 s51, {RM1 >> 32:#x}\ns_mov_b32 s55, 13")
        e.label(l1)
        e("v_lshlrev_b32 v44, 2, v40\nv_lshrrev_b64 v[46:47], v44, s[50:51]\nv_and_b32 v46, 15, v46\nv_add_u32 v46, s55, v46")
        e(f"v_mul_u32_u24 v46, {TROW}, v46\nv_add3_u32 v46, v46, v42, s48")
        e(f"s_mov_b32 s50, {RMX & 0xffffffff:#x}\ns_mov_b32 s51, 0")
        e("v_lshrrev_b64 v[48:49], v44, s[50:51]\nv_and_b32 v48, 15, v48\nv_add_u32 v48, 19, v48")
        e(f"v_mul_u32_u24 v48, {TROW}, v48\nv_add3_u32 v48, v48, v42, s48")
        for ks in range(8):
            e(f"ds_read_b128 v[{80+4*ks}:{83+4*ks}], v43 offset:{64*ks}")
            e(f"ds_read_b128 v[{112+4*ks}:{115+4*ks}], v46 offset:{64*ks}")
        for r in range(52, 60): e(f"v_mov_b32 v{r}, 0")
        for ks in range(8):
            e(f"s_waitcnt lgkmcnt({14-2*ks})")
            e(f"v_mfma_f32_16x16x32_f16 v[52:55], v[{112+4*ks}:{115+4*ks}], v[{80+4*ks}:{83+4*ks}], v[52:55]")
        lx = self.L("nox")
        e(f"s_cmp_eq_u32 s53, 0\ns_cbranch_scc0 {lx}")
        for ks in range(8):
            e(f"ds_read_b128 v[{112+4*ks}:{115+4*ks}], v48 offset:{64*ks}")
        for ks in range(8):
            e(f"s_waitcnt lgkmcnt({7-ks})")
            e(f"v_mfma_f32_16x16x32_f16 v[56:59], v[{112+4*ks}:{115+4*ks}], v[{80+4*ks}:{83+4*ks}], v[56:59]")
        e.label(lx)
        e(f"s_lshr_b32 s48, {sW}, 2\ns_mul_i32 s48, s48, {KTC}\ns_add_u32 s48, s48, {KT + 3*KTS}")
        e(f"s_lshl_b32 s49, s53, 10\ns_lshl_b32 s55, s54, 8\ns_add_u32 s49, s49, s55")
        e(f"s_sub_u32 s49, s48, s49\ns_add_u32 s49, s49, {2*1088}")
        e("v_lshrrev_b32 v44, 1, v41\nv_lshlrev_b32 v44, 9, v44")
        e("v_lshlrev_b32 v45, 4, v40\nv_add_u32 v44, v44, v45")
        e("v_and_b32 v45, 1, v41\nv_lshlrev_b32 v45, 3, v45")
        e("v_sub_u32 v45, v45, v44\nv_add_u32 v45, s49, v45")
        e("v_cvt_pk_f16_f32 v60, v52, v53\nv_cvt_pk_f16_f32 v61, v54, v55")
        e("ds_write_b64 v45, v[60:61]")
        lx2 = self.L("nox2")
        e(f"s_cmp_eq_u32 s53, 0\ns_cbranch_scc0 {lx2}")
        e("v_and_b32 v44, 3, v40\nv_mul_u32_u24 v44, 192, v44")
        e("v_lshrrev_b32 v45, 2, v40\nv_lshlrev_b32 v45, 1, v45\nv_sub_u32 v44, v44, v45")
        e(f"s_lshl_b32 s55, s54, 3\ns_sub_u32 s49, s48, s55\ns_add_u32 s49, s49, {2*(1184+35) - 48}")
        e("v_add_u32 v44, s49, v44")
        e("v_cvt_pk_f16_f32 v60, v56, v57\nv_cvt_pk_f16_f32 v61, v58, v59")
        e("s_mov_b64 exec, 0xffff")
        e("ds_write_b16 v44, v60 offset:48\nds_write_b16_d16_hi v44, v60 offset:32\nds_write_b16 v44, v61 offset:16\nds_write_b16_d16_hi v44, v61")
        e("s_mov_b64 exec, -1")
        lx3 = self.L("nox3")
        e(f"s_cmp_eq_u32 s54, 0\ns_cbranch_scc0 {lx3}")
        e("v_cvt_pk_f16_f32 v60, v56, v56\nv_mov_b32 v44, s48")
        e("s_mov_b64 exec, 0x10000")
        e(f"ds_write_b16 v44, v60 offset:{2*67}\nds_write_b32 v44, v60 offset:{2*68}\nds_write_b32 v44, v60 offset:{2*70}")
        e("s_mov_b64 exec, -1")
        e.label(lx3)
        e.label(lx2)
        e("s_waitcnt lgkmcnt(0)\ns_barrier")
        self.stamp()
        self.maybe_stop("kgen")
        self.weights_dma()
        e(f"v_cmp_le_u32 vcc, 196, v0\nv_cndmask_b32 v40, 0, 1, vcc")
        e(f"v_mul_u32_u24 v40, {KTC - 196*16}, v40\nv_add_u32 v40, v40, v3\nv_add_u32 v40, {KT}, v40")
        e("v_cmp_gt_u32 vcc, 392, v0\ns_and_saveexec_b64 s[50:51], vcc")
        e(f"ds_read_b128 v[44:47], v40 offset:{3*KTS}\nds_read_b64 v[48:49], v40 offset:{3*KTS+16}")
        e("s_waitcnt lgkmcnt(0)")
        for j in range(4): e(f"v_alignbit_b32 v{52+j}, v{45+j}, v{44+j}, 16")
        for j in range(4): e(f"v_mov_b32 v{56+j}, v{45+j}")
        for j in range(4): e(f"v_alignbit_b32 v{60+j}, v{46+j}, v{45+j}, 16")
        e(f"ds_write_b128 v40, v[52:55] offset:{2*KTS}\nds_write_b128 v40, v[56:59] offset:{KTS}\nds_write_b128 v40, v[60:63]")
        e("s_mov_b64 exec, s[50:51]")
        self.maybe_stop("copies")

    def poll_loop_begin(self):
        pass

    def h1_consume(self):
        e = self.e
        lp, ok = self.L("h1p"), self.L("h1ok")
        e("v_mov_b32 v64, 0x00070007\nv_mov_b32 v65, 0x7c007c00\nv_mov_b32 v66, 0x4c004c00\ns_mov_b32 s55, 0")
        l7, l4, lchk = self.L("w7"), self.L("w4"), self.L("chk")
        e(f"s_cmp_ge_u32 s2, 144\ns_cbranch_scc1 {lp}")
        e(f"s_cmp_ge_u32 s2, 112\ns_cbranch_scc1 {l7}")
        e(f"s_waitcnt vmcnt(4)\ns_branch {lchk}")
        e.label(l7)
        e(f"s_waitcnt vmcnt(7)\ns_branch {lchk}")
        e.label(lp)
        e("s_waitcnt vmcnt(0)")
        e.label(lchk)
        e(f"v_xor_b32 v68, {sT[0]}, v72\nv_and_b32 v68, v68, v64")
        for q in range(1, 4):
            e(f"v_xor_b32 v69, {sT[q]}, v{72+q}\nv_and_or_b32 v68, v69, v64, v68")
        e("v_and_b32 v69, v72, v65\nv_and_b32 v70, v73, v65\nv_pk_max_u16 v69, v69, v70")
        e("v_and_b32 v70, v74, v65\nv_pk_max_u16 v69, v69, v70\nv_and_b32 v70, v75, v65\nv_pk_max_u16 v69, v69, v70")
        e("v_pk_max_u16 v69, v69, v66\nv_xor_b32 v69, v69, v66\nv_or_b32 v68, v68, v69")
        e("v_cmp_ne_u32 vcc, 0, v68")
        e(f"s_cbranch_vccz {ok}")
        e("s_add_u32 s55, s55, 1\ns_cmp_lt_u32 s55, 0x20000")
        e(f"s_cbranch_scc0 {ok}")
        e("s_sleep 2")
        e(f"global_load_dwordx4 v[72:75], v2, {S_H1} sc1")
        e.flush()
        e(f"s_branch {lp}")
        e.label(ok)
        e("v_mov_b32 v64, 0xfff8fff8")
        for q in range(4): e(f"v_and_b32 v{72+q}, v{72+q}, v64")
        e(f"v_lshrrev_b32 v68, 3, v0\nv_mul_u32_u24 v68, 80, v68")
        e(f"v_bfe_u32 v69, v0, 1, 2\nv_lshlrev_b32 v69, 4, v69")
        e(f"v_and_b32 v70, 1, v0\nv_mul_u32_u24 v70, {UIC}, v70\nv_add3_u32 v68, v68, v69, v70")
        e(f"v_add_u32 v68, {UI + 32*80}, v68")
        e(f"ds_write_b128 v68, v[72:75]")
        lz = self.L("noep")
        e(f"s_or_b32 s48, {sA}, {sW}\ns_cmp_eq_u32 s48, 0\ns_cbranch_scc0 {lz}")
        e(f"v_mov_b32 v68, 0\nv_mov_b32 v69, {sE}\ns_mov_b64 exec, 1\nglobal_store_dword v68, v69, {S_WS} sc1\ns_mov_b64 exec, -1")
        e.label(lz)
        e("s_waitcnt lgkmcnt(0)\ns_barrier")
        self.stamp()
        self.maybe_stop("h1")

    def conv(self):
        e = self.e
        lt, lj = self.L("twave"), self.L("convdone")
        e(f"s_cmp_ge_u32 {sW}, 4\ns_cbranch_scc1 {lt}")
        e(f"s_lshr_b32 s48, {sW}, 1\ns_and_b32 s49, {sW}, 1")
        e("v_and_b32 v40, 31, v1\nv_lshrrev_b32 v41, 5, v1")
        e(f"v_and_b32 v42, 3, v40\nv_mul_u32_u24 v42, {KTS}, v42")
        e("v_lshrrev_b32 v43, 2, v40\nv_lshlrev_b32 v43, 3, v43\nv_sub_u32 v42, v42, v43")
        e("v_lshlrev_b32 v43, 4, v41\nv_add_u32 v42, v42, v43")
        e(f"s_mul_i32 s50, s48, {KTC}\ns_lshl_b32 s51, s49, 5\ns_add_u32 s50, s50, s51\ns_add_u32 s50, s50, {KT + 2*(T0 - 32*33)}")
        e("v_add_u32 v42, s50, v42")
        e("v_mul_u32_u24 v44, 80, v40\nv_add_u32 v44, v44, v43")
        e(f"s_mul_i32 s50, s48, {UIC}\ns_add_u32 s50, s50, s51\ns_add_u32 s50, s50, {UI}")
        e("v_add_u32 v44, s50, v44")
        for r in range(64, 96): e(f"v_mov_b32 v{r}, 0")
        NST = 3
        def regsA(m): b = 96 + 12*(m % NST); return b
        def issue(m):
            b = regsA(m)
            offA = 64*(33 - m)
            e(f"ds_read_b64 v[{b}:{b+1}], v42 offset:{offA}\nds_read_b64 v[{b+2}:{b+3}], v42 offset:{offA+8}")
            e(f"ds_read_b128 v[{b+4}:{b+7}], v44 offset:{(32 - m + 32)*80}")
            if m <= 31:
                e(f"ds_read_b128 v[{b+8}:{b+11}], v44 offset:{(32 - m)*80}")
        def nops(m): return 4 if m <= 31 else 3
        M = 34
        issue(0); issue(1)
        for m in range(M):
            if m + 2 < M: issue(m + 2)
            out = sum(nops(x) for x in range(m + 1, min(m + 3, M)))
            e(f"s_waitcnt lgkmcnt({out})")
            b = regsA(m)
            e(f"v_mfma_f32_32x32x16_f16 v[80:95], v[{b}:{b+3}], v[{b+4}:{b+7}], v[80:95]")
            if m <= 31:
                e(f"v_mfma_f32_32x32x16_f16 v[64:79], v[{b}:{b+3}], v[{b+8}:{b+11}], v[64:79]")
        e(f"v_mul_u32_u24 v45, 144, v40\nv_add_u32 v45, v45, v43")
        e(f"s_mul_i32 s50, s49, {EXS}\ns_mul_i32 s51, s48, 9216\ns_add_u32 s50, s50, s51\ns_add_u32 s50, s50, {EX}")
        e("v_add_u32 v45, s50, v45")
        for g in range(4):
            e(f"ds_write_b128 v45, v[{64+4*g}:{67+4*g}] offset:{32*g}")
        for g in range(4):
            e(f"ds_write_b128 v45, v[{80+4*g}:{83+4*g}] offset:{32*144 + 32*g}")
        e(f"s_branch {lj}")
        e.label(lt)
        e(f"s_bfe_u32 s48, {sW}, 0x10001\ns_and_b32 s49, {sW}, 1")
        e(f"s_lshl_b32 s50, s48, 1\ns_add_u32 s50, s50, s49\ns_mul_i32 s50, s50, {XAS}\ns_add_u32 s50, s50, {XA}")
        e(f"s_mul_i32 s51, s48, {UIC}\ns_add_u32 s51, s51, {UI + 31*80}")
        for half in range(2):
            e(f"v_add_u32 v40, {64*half + 3}, v1")
            for nm, dk, reg in (("p", -1, 41), ("c", 0, 42), ("n", 1, 43)):
                e(f"v_add_u32 v44, {dk}, v40" if dk >= 0 else f"v_subrev_u32 v44, 1, v40")
                e(f"v_lshrrev_b32 v45, 2, v44\nv_mul_u32_u24 v45, 80, v45\nv_and_b32 v44, 3, v44\nv_lshlrev_b32 v44, 4, v44\nv_add3_u32 v{reg}, v45, v44, s51")
            e("ds_read_b64 v[46:47], v41 offset:8")
            e("ds_read_b128 v[48:51], v42\nds_read_b64 v[52:53], v43")
            e("s_waitcnt lgkmcnt(0)")
            src = [46, 47, 48, 49, 50, 51, 52, 53]
            for i, r in enumerate(src):
                e(f"v_cvt_f32_f16 v{96+2*i}, v{r}")
                e(f"v_cvt_f32_f16_sdwa v{97+2*i}, v{r} dst_sel:DWORD dst_unused:UNUSED_PAD src0_sel:WORD_1")
            V = lambda i: f"v{96+i}"
            lo7, ljn = self.L("o7"), self.L("xj")
            e(f"s_cmp_eq_u32 s49, 0\ns_cbranch_scc1 {lo7}")
            e(f"v_add_f32 v120, {V(0)}, {V(1)}")
            for i in range(2, 9): e(f"v_add_f32 v120, v120, {V(i)}")
            for a in range(1, 8):
                e(f"v_add_f32 v{120+a}, v{120+a-1}, {V(a+8)}\nv_sub_f32 v{120+a}, v{120+a}, {V(a-1)}")
            e(f"s_branch {ljn}")
            e.label(lo7)
            e(f"v_add_f32 v120, {V(1)}, {V(2)}")
            for i in range(3, 8): e(f"v_add_f32 v120, v120, {V(i)}")
            for a in range(1, 8):
                e(f"v_add_f32 v{120+a}, v{120+a-1}, {V(a+7)}\nv_sub_f32 v{120+a}, v{120+a}, {V(a)}")
            e.label(ljn)
            for q in range(4): e(f"v_cvt_pk_f16_f32 v{46+q+2}, v{120+2*q}, v{121+2*q}")
            e(f"v_lshlrev_b32 v44, 4, v1\nv_add_u32 v44, s50, v44")
            e(f"ds_write_b128 v44, v[48:51] offset:{48 + 1024*half}")
        e("s_waitcnt lgkmcnt(0)")
        e("v_lshrrev_b32 v40, 5, v1\nv_lshlrev_b32 v40, 3, v40\nv_bfe_u32 v41, v1, 2, 2\nv_add_u32 v40, v40, v41\nv_lshlrev_b32 v40, 6, v40")
        e("v_bfe_u32 v41, v1, 4, 1\nv_lshlrev_b32 v41, 5, v41\nv_and_b32 v42, 3, v1\nv_lshlrev_b32 v42, 3, v42\nv_add3_u32 v40, v40, v41, v42")
        e("v_add_u32 v40, s50, v40")
        e("v_and_b32 v41, 31, v1\nv_lshrrev_b32 v42, 5, v1")
        e(f"v_and_b32 v43, 3, v41\nv_mul_u32_u24 v43, {KTS}, v43\nv_lshrrev_b32 v44, 2, v41\nv_lshlrev_b32 v44, 3, v44\nv_sub_u32 v43, v43, v44")
        e("v_lshlrev_b32 v44, 4, v42\nv_add_u32 v43, v43, v44")
        e(f"s_mul_i32 s51, s48, {KTC}\ns_mul_i32 s54, s49, 192\ns_add_u32 s51, s51, s54\ns_add_u32 s51, s51, {KT + 2*(1184 + T1)}")
        e("v_add_u32 v43, s51, v43")
        e("s_lshl_b32 s54, s49, 4\nv_subrev_u32 v40, s54, v40")
        for r in range(64, 80): e(f"v_mov_b32 v{r}, 0")
        k = 0
        for i in range(2):
            for ks in range(2):
                b = 96 + 8*k
                offX = 1024*ks + 64 - 16*(2*i + 1)
                e(f"ds_read_b64_tr_b16 v[{b}:{b+1}], v40 offset:{offX}\nds_read_b64_tr_b16 v[{b+2}:{b+3}], v40 offset:{offX + 256}")
                offP = 384*i + 32*ks
                e(f"ds_read_b64 v[{b+4}:{b+5}], v43 offset:{offP}\nds_read_b64 v[{b+6}:{b+7}], v43 offset:{offP+8}")
                k += 1
        for k in range(4):
            b = 96 + 8*k
            e(f"s_waitcnt lgkmcnt({12 - 4*k})")
            e(f"v_mfma_f32_32x32x16_f16 v[64:79], v[{b}:{b+3}], v[{b+4}:{b+7}], v[64:79]")
        e("v_mul_u32_u24 v45, 144, v41\nv_lshlrev_b32 v44, 4, v42\nv_add_u32 v45, v45, v44")
        e(f"s_lshl_b32 s50, s49, 1\ns_add_u32 s50, s50, s48\ns_mul_i32 s50, s50, 4608\ns_add_u32 s50, s50, {R3P}")
        e("v_add_u32 v45, s50, v45")
        for g in range(4):
            e(f"ds_write_b128 v45, v[{64+4*g}:{67+4*g}] offset:{32*g}")
        e.label(lj)
        e("s_waitcnt lgkmcnt(0)\ns_barrier")
        self.stamp()
        self.maybe_stop("conv")
        e("v_lshrrev_b32 v40, 3, v0\nv_mul_u32_u24 v40, 144, v40")
        e("v_bfe_u32 v41, v0, 1, 2\nv_lshlrev_b32 v41, 5, v41")
        e("v_and_b32 v42, 1, v0\nv_mul_u32_u24 v43, 9216, v42\nv_add3_u32 v43, v43, v40, v41")
        e(f"v_add_u32 v43, {EX}, v43")
        e(f"ds_read_b128 v[64:67], v43\nds_read_b128 v[68:71], v43 offset:16")
        e(f"ds_read_b128 v[72:75], v43 offset:{EXS}\nds_read_b128 v[76:79], v43 offset:{EXS+16}")
        e(f"v_lshlrev_b32 v45, 2, v42\nds_read_b32 v46, v45 offset:{MISC}" if MISC < 65536 else f"v_lshlrev_b32 v45, 2, v42\nv_add_u32 v45, {MISC}, v45\nds_read_b32 v46, v45")
        lr = self.L("nor3")
        e(f"s_cmp_ge_u32 {sW}, 4\ns_cbranch_scc0 {lr}")
        e(f"v_mul_u32_u24 v44, 4608, v42\nv_add3_u32 v44, v44, v40, v41\nv_add_u32 v44, {R3P - 32*144}, v44")
        e(f"ds_read_b128 v[80:83], v44\nds_read_b128 v[84:87], v44 offset:16\nds_read_b128 v[88:91], v44 offset:{9216}\nds_read_b128 v[92:95], v44 offset:{9216+16}")
        e("s_waitcnt lgkmcnt(0)")
        for q in range(4):
            e(f"v_pk_add_f32 v[{80+2*q}:{81+2*q}], v[{80+2*q}:{81+2*q}], v[{88+2*q}:{89+2*q}]")
            e(f"v_pk_add_f32 v[{64+2*q}:{65+2*q}], v[{64+2*q}:{65+2*q}], v[{80+2*q}:{81+2*q}]")
        e.label(lr)
        e("s_waitcnt lgkmcnt(0)")
        for q in range(4):
            e(f"v_pk_add_f32 v[{64+2*q}:{65+2*q}], v[{64+2*q}:{65+2*q}], v[{72+2*q}:{73+2*q}]")
            e(f"v_pk_mul_f32 v[{64+2*q}:{65+2*q}], v[{64+2*q}:{65+2*q}], v[46:47] op_sel_hi:[1,0]")
            e(f"v_cvt_pk_bf16_f32 v{72+q}, v{64+2*q}, v{65+2*q}")
            e(f"v_min_u32 v{72+q}, 0xfffffffe, v{72+q}")
        e(f"global_store_dwordx4 v30, v[72:75], {S_H2} sc1")
        self.stamp()

    def ln2(self):
        e = self.e
        e("s_waitcnt vmcnt(1)")
        self.weights_frag()
        e("s_waitcnt vmcnt(0)")
        lp, ok = self.L("h2p"), self.L("h2ok")
        e("s_mov_b32 s55, 0")
        e.label(lp)
        e(f"global_load_dwordx4 v[72:75], v2, {S_H2} sc1")
        e("s_waitcnt vmcnt(0)")
        e("v_max3_u32 v68, v72, v73, v74\nv_max_u32 v68, v68, v75\nv_cmp_eq_u32 vcc, -1, v68")
        e(f"s_cbranch_vccz {ok}")
        e("s_add_u32 s55, s55, 1\ns_cmp_lt_u32 s55, 0x20000")
        e(f"s_cbranch_scc0 {ok}")
        e("s_sleep 2")
        e.flush()
        e(f"s_branch {lp}")
        e.label(ok)
        self.stamp()
        e(f"v_lshlrev_b32 v68, 1, v0\nv_add_u32 v68, {YR}, v68")
        for q in range(4):
            e(f"ds_write_b16 v68, v{72+q} offset:{2*q*1024}\nds_write_b16_d16_hi v68, v{72+q} offset:{(2*q+1)*1024}")
        e("s_waitcnt lgkmcnt(0)\ns_barrier")
        e(f"s_lshl_b32 s48, {sW}, 10\ns_add_u32 s48, s48, {YR}\nv_add_u32 v68, s48, v18")
        e("ds_read_b128 v[72:75], v68")
        e(f"v_add_u32 v68, {LIST}, v3\nds_write_b128 v68, v[32:35]")
        e(f"v_mov_b32 v68, {CNT}\nds_write_b32 v68, v32")
        self.unpack8(4, 40); self.unpack8(8, 52)
        e("s_waitcnt lgkmcnt(0)")
        self.unpack8(72, 80)
        for q in range(4):
            e(f"v_pk_add_f32 v[{80+2*q}:{81+2*q}], v[{80+2*q}:{81+2*q}], v[{52+2*q}:{53+2*q}]")
            e(f"v_cvt_pk_bf16_f32 v76, v{80+2*q}, v{81+2*q}")
            e(f"v_lshlrev_b32 v{80+2*q}, 16, v76\nv_and_b32 v{81+2*q}, 0xffff0000, v76")
            e(f"v_pk_add_f32 v[{80+2*q}:{81+2*q}], v[{80+2*q}:{81+2*q}], v[{40+2*q}:{41+2*q}]")
            e(f"v_cvt_pk_bf16_f32 v{88+q}, v{80+2*q}, v{81+2*q}")
        self.unpack8(88, 40)
        e(f"s_lshl_b32 s54, {sA}, 3\ns_add_u32 s54, s54, {sW}\ns_lshl_b32 s49, s54, 10\nv_add_u32 v69, s49, v18")
        e(f"global_store_dwordx4 v69, v[88:91], {S_HH} sc1")
        self.ln_stats(40, 48, 50, 52)
        self.ln_apply(40, 48, 50, 92, 52)
        e(f"global_store_dwordx4 v69, v[92:95], {S_X2} sc1")
        self.unpack8(92, 80)
        for q in range(4):
            e(f"v_pk_add_f32 v[{80+2*q}:{81+2*q}], v[{80+2*q}:{81+2*q}], v[{40+2*q}:{41+2*q}]")
            e(f"v_cvt_pk_bf16_f32 v{96+q}, v{80+2*q}, v{81+2*q}")
        e(f"global_store_dwordx4 v69, v[96:99], {S_OUT} sc1")
        e("v_mov_b32 v52, 0")
        for q in range(4): e(f"v_dot2_f32_bf16 v52, v{92+q}, v{12+q}, v52")
        self.wred1("v_add_f32", "v52", "v53")
        e("v_cvt_pk_bf16_f32 v52, v52, v52\nv_lshlrev_b32 v52, 16, v52")
        e("v_ashrrev_i32 v53, 31, v52\nv_or_b32 v53, 0x80000000, v53\nv_xor_b32 v52, v52, v53\nv_and_b32 v52, 0xffff0000, v52")
        e(f"s_sub_u32 s49, {0x8000 + 2047}, s54\nv_or_b32 v52, s49, v52")
        e(f"s_lshl_b32 s49, {sW}, 2\ns_add_u32 s49, s49, {KST}\nv_mov_b32 v53, s49")
        e("ds_write_b32 v53, v52")
        e("s_waitcnt vmcnt(0) lgkmcnt(0)\ns_barrier")
        lk = self.L("nokey")
        e(f"s_cmp_eq_u32 {sW}, 0\ns_cbranch_scc0 {lk}")
        e(f"v_add_u32 v53, {KST}, v18\ns_lshl_b32 s48, {sA}, 5\nv_add_u32 v54, s48, v18")
        e(f"s_mov_b64 exec, 3\nds_read_b128 v[56:59], v53\ns_waitcnt lgkmcnt(0)\nglobal_store_dwordx4 v54, v[56:59], {S_KEY} sc1\ns_mov_b64 exec, -1")
        e.label(lk)
        self.stamp()
        self.maybe_stop("ln2")

    def ffn(self):
        e = self.e
        self.ffn_impl()


    def weights_dma(self):
        e = self.e
        l2, ld = self.L("dma2"), self.L("dmad")
        e(f"s_cmp_ge_u32 s2, 144\ns_cbranch_scc1 {ld}")
        e("v_lshrrev_b32 v40, 1, v1\nv_and_b32 v41, 1, v1\nv_lshlrev_b32 v41, 4, v41")
        e(f"s_cmp_ge_u32 s2, 112\ns_cbranch_scc1 {l2}")
        e(f"s_lshl_b32 s48, {sW}, 6\nv_add_u32 v40, s48, v40\ns_movk_i32 s49, 3584\nv_mul_lo_u32 v40, v40, s49")
        e(f"s_lshl_b32 s48, s2, 5\nv_add3_u32 v40, v40, v41, s48\nv_add_u32 v41, {32*3584}, v40")
        e(f"s_lshl_b32 s48, {sW}, 11\ns_add_u32 s48, s48, {TAB}")
        e(f"s_mov_b32 m0, s48\nglobal_load_lds_dwordx4 v40, {S_WG}")
        e(f"s_add_u32 m0, s48, 1024\nglobal_load_lds_dwordx4 v41, {S_WG}")
        e(f"s_add_u32 m0, s48, 16384\nglobal_load_lds_dwordx4 v40, {S_WU}")
        e(f"s_add_u32 m0, s48, {16384+1024}\nglobal_load_lds_dwordx4 v41, {S_WU}")
        e(f"s_branch {ld}")
        e.label(l2)
        e(f"s_mul_i32 s48, {sW}, 224\nv_add_u32 v40, s48, v40\nv_lshlrev_b32 v40, 10, v40")
        e(f"s_sub_u32 s48, s2, 112\ns_lshl_b32 s48, s48, 5\nv_add3_u32 v40, v40, v41, s48")
        e(f"s_mul_i32 s48, {sW}, {224*32}\ns_add_u32 s48, s48, {TAB}")
        for b in range(7):
            e(f"s_add_u32 m0, s48, {1024*b}\nglobal_load_lds_dwordx4 v40, {S_WD}")
            if b < 6: e(f"v_add_u32 v40, {32*1024}, v40")
        e.label(ld)

    def weights_frag(self):
        e = self.e
        l2, ld = self.L("wf2"), self.L("wfd")
        e(f"s_cmp_ge_u32 s2, 144\ns_cbranch_scc1 {ld}")
        e("v_lshrrev_b32 v40, 4, v1\nv_lshlrev_b32 v40, 3, v40\nv_bfe_u32 v41, v1, 2, 2\nv_add_u32 v40, v40, v41\nv_lshlrev_b32 v40, 5, v40")
        e("v_and_b32 v41, 3, v1\nv_lshlrev_b32 v41, 3, v41\nv_add_u32 v40, v40, v41")
        e(f"s_cmp_ge_u32 s2, 112\ns_cbranch_scc1 {l2}")
        e(f"s_lshl_b32 s48, {sW}, 11\ns_add_u32 s48, s48, {TAB}\nv_add_u32 v40, s48, v40")
        k = 0
        for mat in range(2):
            for b in range(2):
                o = mat*16384 + b*1024
                e(f"ds_read_b64_tr_b16 v[{WB+4*k}:{WB+4*k+1}], v40 offset:{o}\nds_read_b64_tr_b16 v[{WB+4*k+2}:{WB+4*k+3}], v40 offset:{o+128}")
                k += 1
        e(f"s_branch {ld}")
        e.label(l2)
        e(f"s_mul_i32 s48, {sW}, {224*32}\ns_add_u32 s48, s48, {TAB}\nv_add_u32 v40, s48, v40")
        for b in range(7):
            e(f"ds_read_b64_tr_b16 v[{WB+4*b}:{WB+4*b+1}], v40 offset:{1024*b}\nds_read_b64_tr_b16 v[{WB+4*b+2}:{WB+4*b+3}], v40 offset:{1024*b+128}")
        e.label(ld)

    def sigmoid(self, d, x, t):
        e = self.e
        e(f"v_mul_f32 v{t}, {0xbfb8aa3b:#x}, v{x}\nv_exp_f32 v{t}, v{t}\nv_add_f32 v{t}, 1.0, v{t}\nv_rcp_f32 v{d}, v{t}")

    def rbf(self, r):
        self.e(f"v_cvt_pk_bf16_f32 v{r}, v{r}, v{r}\nv_lshlrev_b32 v{r}, 16, v{r}")

    def ffn_impl(self):
        e = self.e
        e(f"s_cmp_ge_u32 s2, 144\ns_cbranch_scc1 L_FIN")
        lp, ok = self.L("kp"), self.L("kok")
        e("s_waitcnt vmcnt(0)\ns_mov_b32 s55, 0")
        e.label(lp)
        e(f"global_load_dwordx4 v[72:75], v3, {S_KEY} sc1")
        e("s_waitcnt vmcnt(0)")
        e("v_min3_u32 v68, v72, v73, v74\nv_min_u32 v68, v68, v75\nv_cmp_eq_u32 vcc, 0, v68")
        e(f"s_cbranch_vccz {ok}")
        e("s_add_u32 s55, s55, 1\ns_cmp_lt_u32 s55, 0x20000")
        e(f"s_cbranch_scc0 {ok}")
        e("s_sleep 2")
        e.flush()
        e(f"s_branch {lp}")
        e.label(ok)
        self.stamp()
        e("v_max3_u32 v68, v72, v73, v74\nv_max_u32 v68, v68, v75")
        self.wred1("v_max_u32", "v68", "v69")
        e(f"s_lshl_b32 s48, {sW}, 2\ns_add_u32 s48, s48, {TK}\nv_mov_b32 v69, s48\nds_write_b32 v69, v68")
        e(f"s_waitcnt lgkmcnt(0)\ns_barrier\nv_mov_b32 v69, {TK}")
        e("ds_read_b128 v[76:79], v69\nds_read_b128 v[80:83], v69 offset:16\ns_waitcnt lgkmcnt(0)")
        e("v_min3_u32 v68, v76, v77, v78\nv_min3_u32 v68, v68, v79, v80\nv_min3_u32 v68, v68, v81, v82\nv_min_u32 v68, v68, v83")
        e("v_mov_b32 v69, 0")
        for i in range(4):
            e(f"v_cmp_ge_u32 vcc, v{72+i}, v68\nv_addc_co_u32 v69, vcc, 0, v69, vcc")
        e(f"v_cmp_lt_u32 vcc, 0, v69\ns_and_saveexec_b64 s[50:51], vcc")
        lsk = self.L("noc")
        e(f"s_cbranch_execz {lsk}")
        e(f"v_mov_b32 v70, {CNT}\nds_add_rtn_u32 v70, v70, v69\ns_waitcnt lgkmcnt(0)")
        e(f"v_lshlrev_b32 v70, 2, v70\nv_add_u32 v70, {LIST}, v70")
        e("s_mov_b64 s[48:49], exec")
        for i in range(4):
            e(f"v_cmp_ge_u32 vcc, v{72+i}, v68\ns_and_b64 exec, s[48:49], vcc")
            e(f"ds_write_b32 v70, v{72+i}\nv_add_u32 v70, 4, v70\ns_mov_b64 exec, s[48:49]")
        e.label(lsk)
        e("s_mov_b64 exec, s[50:51]")
        e(f"s_waitcnt lgkmcnt(0)\ns_barrier\nv_mov_b32 v69, {CNT}\nds_read_b32 v68, v69\ns_waitcnt lgkmcnt(0)")
        e("v_readfirstlane_b32 s52, v68")
        lo, li = self.L("ro"), self.L("ri")
        e("v_lshrrev_b32 v40, 3, v0\nv_lshlrev_b32 v40, 2, v40\nv_and_b32 v41, 7, v0\nv_lshlrev_b32 v41, 2, v41")
        e(f"v_add_u32 v40, {LIST}, v40\nv_add_u32 v41, {LIST}, v41\ns_mov_b32 s53, 0")
        e.label(lo)
        e("v_add_u32 v42, s53, v40\nds_read_b32 v43, v42\nv_mov_b32 v44, 0\ns_mov_b32 s54, 0")
        e.label(li)
        e("v_add_u32 v42, s54, v41")
        for it in range(8): e(f"ds_read_b32 v{48+it}, v42 offset:{32*it}")
        e("s_waitcnt lgkmcnt(0)")
        for it in range(8): e(f"v_cmp_gt_u32 vcc, v{48+it}, v43\nv_addc_co_u32 v44, vcc, 0, v44, vcc")
        e("s_add_u32 s54, s54, 256\ns_lshl_b32 s48, s52, 2\ns_cmp_lt_u32 s54, s48")
        e.flush()
        e(f"s_cbranch_scc1 {li}")
        e("v_add_u32_dpp v44, v44, v44 quad_perm:[1,0,3,2] row_mask:0xf bank_mask:0xf")
        e("v_add_u32_dpp v44, v44, v44 quad_perm:[2,3,0,1] row_mask:0xf bank_mask:0xf")
        e("v_add_u32_dpp v44, v44, v44 row_half_mirror row_mask:0xf bank_mask:0xf")
        e("v_cmp_gt_u32 vcc, 8, v44\nv_cmp_ne_u32 s[48:49], 0, v43\ns_and_b64 vcc, vcc, s[48:49]\ns_and_saveexec_b64 s[50:51], vcc")
        e(f"v_lshlrev_b32 v44, 2, v44\nv_add_u32 v44, {SEL}, v44\nds_write_b32 v44, v43\ns_mov_b64 exec, s[50:51]")
        e("s_add_u32 s53, s53, 256\ns_lshl_b32 s48, s52, 2\ns_cmp_lt_u32 s53, s48")
        e.flush()
        e(f"s_cbranch_scc1 {lo}")
        e("s_waitcnt lgkmcnt(0)\ns_barrier")
        self.stamp()
        self.maybe_stop("topk")
        f2 = self.L("ffn2")
        e(f"s_cmp_ge_u32 s2, 112\ns_cbranch_scc1 {f2}")
        e(f"v_and_b32 v40, 7, v1\nv_lshlrev_b32 v40, 2, v40\nv_add_u32 v40, {SEL}, v40\nds_read_b32 v41, v40\ns_waitcnt lgkmcnt(0)")
        e("v_and_b32 v41, 0x7ff, v41\nv_sub_u32 v41, 2047, v41\nv_lshlrev_b32 v41, 10, v41")
        e(f"v_lshrrev_b32 v42, 4, v1\nv_lshlrev_b32 v42, 4, v42\ns_lshl_b32 s48, {sW}, 7\nv_add3_u32 v41, v41, v42, s48")
        e(f"global_load_dwordx4 v[44:47], v41, {S_X2} sc1\nglobal_load_dwordx4 v[48:51], v41, {S_X2} offset:64 sc1")
        for r in range(52, 60): e(f"v_mov_b32 v{r}, 0")
        e("s_waitcnt vmcnt(1)")
        e(f"v_mfma_f32_16x16x32_bf16 v[52:55], v[44:47], v[{WB}:{WB+3}], v[52:55]")
        e(f"v_mfma_f32_16x16x32_bf16 v[56:59], v[44:47], v[{WB+8}:{WB+11}], v[56:59]")
        e("s_waitcnt vmcnt(0)")
        e(f"v_mfma_f32_16x16x32_bf16 v[52:55], v[48:51], v[{WB+4}:{WB+7}], v[52:55]")
        e(f"v_mfma_f32_16x16x32_bf16 v[56:59], v[48:51], v[{WB+12}:{WB+15}], v[56:59]")
        e(f"s_lshl_b32 s48, {sW}, 10\ns_add_u32 s48, s48, {PART}\nv_add_u32 v40, s48, v18")
        e("s_mov_b64 exec, 0xffffffff\nds_write_b128 v40, v[52:55]\nds_write_b128 v40, v[56:59] offset:512\ns_mov_b64 exec, -1")
        e("s_waitcnt lgkmcnt(0)\ns_barrier")
        e(f"s_cmp_ge_u32 {sW}, 2\ns_cbranch_scc1 L_FIN")
        e("v_lshrrev_b32 v40, 4, v0\nv_and_b32 v41, 15, v0\nv_lshrrev_b32 v42, 2, v40\nv_lshlrev_b32 v42, 4, v42\nv_add_u32 v42, v42, v41\nv_lshlrev_b32 v42, 4, v42")
        e(f"v_and_b32 v43, 3, v40\nv_lshlrev_b32 v43, 2, v43\nv_add_u32 v42, v42, v43\nv_add_u32 v42, {PART}, v42")
        for w in range(8): e(f"ds_read_b32 v{44+w}, v42 offset:{1024*w}\nds_read_b32 v{52+w}, v42 offset:{1024*w+512}")
        e("s_waitcnt lgkmcnt(0)")
        for w in range(1, 8): e(f"v_add_f32 v44, v44, v{44+w}\nv_add_f32 v52, v52, v{52+w}")
        self.rbf(44); self.rbf(52)
        self.sigmoid(45, 44, 46)
        e("v_mul_f32 v44, v44, v45"); self.rbf(44)
        e("v_mul_f32 v44, v44, v52\nv_cvt_pk_bf16_f32 v44, v44, v44")
        e(f"v_lshlrev_b32 v45, 1, v0\nv_add_u32 v45, {AL}, v45\nds_write_b16 v45, v44\ns_waitcnt lgkmcnt(0)")
        e(f"s_lshl_b32 s48, {sW}, 7\ns_add_u32 s49, s48, {AL}\nv_add_u32 v45, s49, v18\ns_lshl_b32 s49, s2, 8\ns_add_u32 s49, s49, s48\nv_add_u32 v46, s49, v18")
        e(f"s_mov_b64 exec, 0xff\nds_read_b128 v[48:51], v45\ns_waitcnt lgkmcnt(0)")
        for q in range(4): e(f"v_min_u32 v{48+q}, 0xfffffffe, v{48+q}")
        e(f"global_store_dwordx4 v46, v[48:51], {S_ACT} sc1\ns_mov_b64 exec, -1")
        self.stamp(14)
        e("s_branch L_FIN")
        e.label(f2)
        e(f"v_bfe_u32 v40, v0, 4, 3\nv_lshlrev_b32 v40, 2, v40\nv_add_u32 v40, {SEL}, v40\nds_read_b32 v60, v40\ns_waitcnt lgkmcnt(0)")
        e("v_and_b32 v41, 0x7ff, v60\nv_sub_u32 v41, 2047, v41\nv_lshlrev_b32 v41, 10, v41")
        e("v_and_b32 v42, 15, v0\nv_lshlrev_b32 v42, 1, v42\ns_sub_u32 s48, s2, 112\ns_lshl_b32 s48, s48, 5\nv_add3_u32 v61, v41, v42, s48")
        e("v_mov_b32 v62, 0\nv_mov_b32 v63, 0")
        e(f"global_load_short_d16_hi v62, v61, {S_HH} sc1\nglobal_load_short_d16_hi v63, v61, {S_X2} sc1")
        e("v_and_b32 v64, 0xffff0000, v60\nv_ashrrev_i32 v65, 31, v64\nv_not_b32 v65, v65\nv_or_b32 v65, 0x80000000, v65\nv_xor_b32 v64, v64, v65\nv_and_b32 v64, 0xffff0000, v64")
        self.sigmoid(65, 64, 66); self.rbf(65)
        e(f"v_and_b32 v40, 7, v1\nv_lshlrev_b32 v40, 5, v40\nv_bfe_u32 v41, v1, 4, 1\nv_lshlrev_b32 v41, 4, v41\nv_lshrrev_b32 v42, 5, v1\nv_lshlrev_b32 v42, 8, v42")
        e(f"v_add3_u32 v40, v40, v41, v42\ns_mul_i32 s48, {sW}, {14*256}\nv_add_u32 v40, s48, v40")
        lp2, ok2 = self.L("ap"), self.L("aok")
        e("s_mov_b32 s55, 0")
        e.label(lp2)
        for i in range(7): e(f"global_load_dwordx4 v[{72+4*i}:{75+4*i}], v40, {S_ACT} offset:{512*i} sc1")
        e("s_waitcnt vmcnt(0)")
        e("v_max3_u32 v68, v72, v73, v74")
        for r in range(75, 99, 2): e(f"v_max3_u32 v68, v68, v{r}, v{r+1}")
        e("v_max_u32 v68, v68, v99\nv_cmp_eq_u32 vcc, -1, v68")
        e(f"s_cbranch_vccz {ok2}")
        e("s_add_u32 s55, s55, 1\ns_cmp_lt_u32 s55, 0x20000")
        e(f"s_cbranch_scc0 {ok2}")
        e("s_sleep 2")
        e.flush()
        e(f"s_branch {lp2}")
        e.label(ok2)
        self.stamp(13)
        for r in range(52, 56): e(f"v_mov_b32 v{r}, 0")
        for i in range(7):
            e(f"v_mfma_f32_16x16x32_bf16 v[52:55], v[{72+4*i}:{75+4*i}], v[{WB+4*i}:{WB+4*i+3}], v[52:55]")
        e(f"s_lshl_b32 s48, {sW}, 10\ns_add_u32 s48, s48, {PART}\nv_add_u32 v40, s48, v18")
        e("s_mov_b64 exec, 0xffffffff\nds_write_b128 v40, v[52:55]\ns_mov_b64 exec, -1")
        e("s_waitcnt lgkmcnt(0)\ns_barrier")
        e(f"s_cmp_ge_u32 {sW}, 2\ns_cbranch_scc1 L_FIN")
        e("v_lshrrev_b32 v40, 4, v0\nv_and_b32 v41, 15, v0\nv_lshrrev_b32 v42, 2, v40\nv_lshlrev_b32 v42, 4, v42\nv_add_u32 v42, v42, v41\nv_lshlrev_b32 v42, 4, v42")
        e(f"v_and_b32 v43, 3, v40\nv_lshlrev_b32 v43, 2, v43\nv_add_u32 v42, v42, v43\nv_add_u32 v42, {PART}, v42")
        for w in range(8): e(f"ds_read_b32 v{44+w}, v42 offset:{1024*w}")
        e("s_waitcnt lgkmcnt(0)")
        for w in range(1, 8): e(f"v_add_f32 v44, v44, v{44+w}")
        self.rbf(44)
        e("v_mul_f32 v44, v44, v65"); self.rbf(44)
        e("v_add_f32 v44, v63, v44"); self.rbf(44)
        e("v_add_f32 v44, v62, v44\nv_cvt_pk_bf16_f32 v44, v44, v44")
        e(f"global_store_short v61, v44, {S_OUT}")
        self.stamp(14)

    def prof_out(self):
        e = self.e
        lz = self.L("np")
        e("s_waitcnt lgkmcnt(0)")
        e(f"s_cmp_eq_u32 {sW}, {self.pw}\ns_cbranch_scc0 {lz}")
        e(f"s_lshl_b32 s48, s2, 7\ns_add_u32 s48, s48, {PROFOFF}\nv_mov_b32 v200, s48\ns_mov_b64 exec, 1")
        for k in range(self.nstamp):
            e(f"v_mov_b32 v201, s{70+2*k}\nglobal_store_dword v200, v201, {S_WS} offset:{4*k}")
        e.label(lz)

HEADER = open("sequential_preLN__ssm_conv_s4d__moe_arch_mod__prompt.s.ref").read().split("; Override launch")[0] + \
    f"; @launch grid=(256,1,1) block=(512,1,1) lds={LDS_BYTES}"
FOOTER = f""".section .rodata,"a"
.p2align 6
.amdhsa_kernel {KNAME}
  .amdhsa_next_free_vgpr 256
  .amdhsa_next_free_sgpr 102
  .amdhsa_accum_offset 256
  .amdhsa_group_segment_fixed_size 0
  .amdhsa_kernarg_size 120
  .amdhsa_user_sgpr_count 2
  .amdhsa_user_sgpr_kernarg_segment_ptr 1
  .amdhsa_system_sgpr_workgroup_id_x 1
.end_amdhsa_kernel"""

if __name__ == "__main__":
    import argparse
    ap = argparse.ArgumentParser()
    ap.add_argument("-o", default="k.s"); ap.add_argument("--prof", action="store_true")
    ap.add_argument("--cyc", action="store_true"); ap.add_argument("--pw", type=int, default=0); ap.add_argument("--stop"); ap.add_argument("--dump")
    a = ap.parse_args()
    dump = tuple(int(x, 0) for x in a.dump.split(",")) if a.dump else None
    g = G(prof=a.prof, stop=a.stop, dump=dump, cyc=a.cyc, pw=a.pw)
    open(a.o, "w").write(g.build())
    print("instrs", g.e.ninstr, "nops", g.e.nnops)
```
